```python
import torch

def _softmax(x, axis=-1):
    return torch.softmax(x, dim=axis)
def _gelu(x):
    return torch.nn.functional.gelu(x, approximate="tanh")
def _silu(x):
    return torch.nn.functional.silu(x)
def _sigmoid(x):
    return torch.sigmoid(x)
def _layernorm(x, axis=-1, eps=1e-5):
    m = x.mean(dim=axis, keepdim=True)
    v = x.var(dim=axis, keepdim=True, unbiased=False)
    return (x - m) / torch.sqrt(v + eps)
def _scatter_add(tgt, idx, src, axis=0):
    return tgt.clone().index_add_(axis, idx, src)
def _segment_sum(src, seg, n):
    out = torch.zeros((n,) + src.shape[1:], dtype=src.dtype)
    return out.index_add_(0, seg, src)
def _pad(x, pw):
    flat = tuple(v for pair in reversed(pw) for v in pair)
    return torch.nn.functional.pad(x, flat)

kernel_name = 'gated_mix__compressed_kv_cla__swiglu_ffn__prompt'

def setup_inputs():

    _w = (lambda a: (lambda t: t.to(torch.bfloat16) if t.is_floating_point() else t)(torch.as_tensor(a)))
    def _A_setup():
        B, H, Sq, Sk, D, M = 1, 32, 2048, 2048, 128, 640
        Dc = 4 * D
        return {
            "x": _w((lambda *s: torch.randn(*s, dtype=torch.bfloat16) * 0.05)(B, Sq, M)),
            "c_kv": _w((lambda *s: torch.randn(*s, dtype=torch.bfloat16) * 0.4)(B, Sk, Dc)),
            "w_q": _w((lambda *s: torch.randn(*s, dtype=torch.bfloat16) * 6.4)(M, H, D) * (M ** -0.5)),
            "w_uk": _w((lambda *s: torch.randn(*s, dtype=torch.bfloat16) * 6.4)(Dc, H, D) * (Dc ** -0.5)),
            "w_uv": _w((lambda *s: torch.randn(*s, dtype=torch.bfloat16) * 0.4)(Dc, H, D) * (Dc ** -0.5)),
            "w_o": _w((lambda *s: torch.randn(*s, dtype=torch.bfloat16) * 0.4)(H, D, M) * ((H * D) ** -0.5)),
        }
    _A_in = _A_setup()

    def _B_setup():
        B, S, D, F = 1, 2048, 640, 1728
        return {
            "x": _w((lambda *s: torch.randn(*s, dtype=torch.bfloat16) * 0.05)(B, S, D)),
            "w_gate": _w((lambda *s: torch.randn(*s, dtype=torch.bfloat16) * 0.05)(D, F)),
            "w_up": _w((lambda *s: torch.randn(*s, dtype=torch.bfloat16) * 0.05)(D, F)),
            "w_down": _w((lambda *s: torch.randn(*s, dtype=torch.bfloat16) * 0.05)(F, D)),
        }
    _B_in = _B_setup()

    return {
        "A_x": _A_in["x"],
        "A_c_kv": _A_in["c_kv"],
        "A_w_q": _A_in["w_q"],
        "A_w_uk": _A_in["w_uk"],
        "A_w_uv": _A_in["w_uv"],
        "A_w_o": _A_in["w_o"],
        "B_x": _B_in["x"],
        "B_w_gate": _B_in["w_gate"],
        "B_w_up": _B_in["w_up"],
        "B_w_down": _B_in["w_down"],
        "gate_w": _w((lambda *s: torch.randn(*s, dtype=torch.bfloat16) * 0.05)(640) * 16.0),
    }

def reference(A_x, A_c_kv, A_w_q, A_w_uk, A_w_uv, A_w_o, B_x, B_w_gate, B_w_up, B_w_down, gate_w):
    def _A_ref(x, c_kv, w_q, w_uk, w_uv, w_o):
        B, Sq, M = x.shape[0], x.shape[1], x.shape[2]
        Sk = c_kv.shape[1]
        H, D = w_q.shape[1], w_q.shape[2]
        q = torch.einsum("bqm,mhd->bhqd", x, w_q)
        k = torch.einsum("bkc,chd->bhkd", c_kv, w_uk)
        v = torch.einsum("bkc,chd->bhkd", c_kv, w_uv)
        scores = torch.einsum("bhqd,bhkd->bhqk", q, k) * (D ** -0.5)
        off = Sk - Sq
        qi = torch.arange(Sq)[:, None]
        kj = torch.arange(Sk)[None, :]
        cmask = kj <= (qi + off)
        scores = torch.where(cmask[None, None], scores, -1e9)
        p = _softmax(scores, axis=-1)
        ctx = torch.einsum("bhqk,bhkd->bhqd", p, v)
        return torch.einsum("bhqd,hdm->bqm", ctx, w_o)

    def _B_ref(x, w_gate, w_up, w_down):
        g = _silu(x @ w_gate)
        u = x @ w_up
        return (g * u) @ w_down

    x = A_x
    g = _sigmoid((x * gate_w).sum(-1, keepdims=True))
    a = _A_ref(x, A_c_kv, A_w_q, A_w_uk, A_w_uv, A_w_o)
    b = _B_ref(x, B_w_gate, B_w_up, B_w_down)
    return g * a + (1 - g) * b
```

```python
import re

TRANS = ("v_exp_f32", "v_log_f32", "v_rcp_f32", "v_rsq_f32", "v_sqrt_f32", "v_sin_f32", "v_cos_f32")

_reg_re = re.compile(r"^(-|abs\(|\|)?([vas])(\d+)\)?\|?$")
_rng_re = re.compile(r"^(-)?([vas])\[(\d+):(\d+)\]$")


def regs_of(tok):
    tok = tok.strip()
    m = _rng_re.match(tok)
    if m:
        return [f"{m.group(2)}{i}" for i in range(int(m.group(3)), int(m.group(4)) + 1)]
    m = _reg_re.match(tok)
    if m:
        return [f"{m.group(2)}{m.group(3)}"]
    if tok in ("vcc", "exec"):
        return [tok]
    if tok in ("vcc_lo", "vcc_hi"):
        return ["vcc"]
    if tok in ("exec_lo", "exec_hi"):
        return ["exec"]
    if tok == "m0":
        return ["m0"]
    return []


def split_ops(s):
    out, depth, cur = [], 0, ""
    for ch in s:
        if ch in "[(":
            depth += 1
        if ch in "])":
            depth -= 1
        if ch == "," and depth == 0:
            out.append(cur.strip()); cur = ""
        else:
            cur += ch
    if cur.strip():
        out.append(cur.strip())
    return out


class Ins:
    __slots__ = ("text", "op", "kind", "dst", "src", "srcC", "srcAB", "tag", "states")

    def __init__(self, text, tag=None):
        self.text = text
        self.tag = tag
        t = text.split(";")[0].strip()
        self.dst, self.src, self.srcC, self.srcAB = [], [], [], []
        self.states = 1
        if t.endswith(":"):
            self.op, self.kind, self.states = t, "label", 0
            return
        if t.startswith(".") or not t:
            self.op, self.kind, self.states = t, "directive", 0
            return
        parts = t.split(None, 1)
        op = parts[0]
        self.op = op
        rest = parts[1] if len(parts) > 1 else ""
        ops = split_ops(rest)
        mods = ""
        if ops:
            last = ops[-1].split(None, 1)
            if len(last) > 1:
                ops[-1], mods = last[0], last[1]
        R = [regs_of(o) for o in ops]
        flat = lambda xs: [r for x in xs for r in x]
        if op.startswith("v_mfma"):
            self.kind = "mfma"
            self.dst = R[0]; self.srcAB = R[1] + R[2]; self.srcC = R[3]
            self.src = self.srcAB + self.srcC
        elif op.startswith("v_cmp"):
            self.kind = "valu"; self.dst = R[0]; self.src = flat(R[1:])
            if op.startswith("v_cmpx"):
                self.dst = self.dst + ["exec"]
        elif op.startswith("v_permlane") and "swap" in op:
            self.kind = "valu"; self.dst = R[0] + R[1]; self.src = R[0] + R[1]
        elif op in ("v_readfirstlane_b32", "v_readlane_b32"):
            self.kind = "valu"; self.dst = R[0]; self.src = flat(R[1:])
        elif op.startswith("v_"):
            self.kind = "trans" if op.replace("_e32", "").replace("_e64", "") in TRANS else "valu"
            self.dst = R[0]; self.src = flat(R[1:])
            if "_co_" in op:
                self.dst = R[0] + R[1]; self.src = flat(R[2:])
            if op.startswith("v_fmac") or op.startswith("v_pk_fmac") or op.startswith("v_dot2c") or "dpp" in op or "row_" in mods or "quad_perm" in mods or op.startswith("v_writelane"):
                self.src = self.src + R[0]
            if op.startswith("v_cndmask") and len(ops) == 3:
                self.src = self.src + ["vcc"]
        elif op.startswith("ds_read") or op.startswith("ds_bpermute") or op.startswith("ds_permute") or op.startswith("ds_swizzle"):
            self.kind = "ds_read"; self.dst = R[0]; self.src = flat(R[1:])
        elif op.startswith("ds_write"):
            self.kind = "ds_write"; self.src = flat(R)
        elif op.startswith("buffer_load") or op.startswith("global_load"):
            if re.search(r"\blds\b", mods) or "_lds_" in op:
                self.kind = "dma"; self.src = flat(R) + ["m0"]
            else:
                self.kind = "vload"; self.dst = R[0]; self.src = flat(R[1:])
        elif op.startswith("buffer_store") or op.startswith("global_store"):
            self.kind = "vstore"; self.src = flat(R)
        elif op.startswith("buffer_atomic") or op.startswith("global_atomic"):
            self.kind = "vstore"; self.src = flat(R)
            if "sc0" in mods:
                self.kind = "vload"; self.dst = R[0]
        elif op in ("buffer_wbl2", "buffer_inv"):
            self.kind = "vstore"
        elif op.startswith("s_load") or op.startswith("s_buffer_load") or op in ("s_memtime", "s_memrealtime"):
            self.kind = "smem"; self.dst = R[0]; self.src = flat(R[1:])
        elif op == "s_waitcnt":
            self.kind = "wait"
        elif op == "s_nop":
            self.kind = "nop"; self.states = int(ops[0], 0) + 1
        elif op == "s_barrier":
            self.kind = "barrier"
        elif op.startswith("s_cbranch") or op == "s_branch" or op == "s_endpgm" or op.startswith("s_setpc") or op.startswith("s_swappc"):
            self.kind = "branch"
            if "vcc" in op: self.src = ["vcc"]
            if "exec" in op: self.src = ["exec"]
        elif op.startswith("s_cmp") or op.startswith("s_bitcmp"):
            self.kind = "salu"; self.src = flat(R)
        elif op.startswith("s_"):
            self.kind = "salu"
            if R:
                self.dst = R[0]; self.src = flat(R[1:])
            if "saveexec" in op:
                self.dst = self.dst + ["exec"]; self.src = self.src + ["exec"]
            if op in ("s_addk_i32", "s_mulk_i32"):
                self.src = self.src + R[0]
        else:
            raise ValueError("unknown instruction: " + text)

    def is_valu(self):
        return self.kind in ("valu", "trans")


class Prog:
    def __init__(self):
        self.ins = []
        self.lgkm = []
        self.vm = []
        self.smem_pending = set()
        self.auto = True

    def raw(self, text):
        self.ins.append(Ins(text))

    def __call__(self, text, tag=None):
        for line in text.split("\n"):
            line = line.strip()
            if line:
                self.emit(Ins(line, tag))

    def _need(self, q, regs, key):
        idx = -1
        for i, e in enumerate(q):
            if key(e) & regs:
                idx = i
        return idx

    def emit(self, I):
        if I.tag == "TCH":
            I.dst = []
        if self.auto and I.kind not in ("label", "directive", "wait"):
            touched = set(I.src) | set(I.dst)
            w = []
            if self.smem_pending & touched:
                w.append("lgkmcnt(0)"); self.lgkm = []; self.smem_pending = set()
            i = self._need(self.lgkm, touched, lambda e: e)
            if i >= 0:
                if self.smem_pending:
                    n = 0; self.smem_pending = set()
                else:
                    n = len(self.lgkm) - 1 - i
                n = min(n, 15)
                w.append(f"lgkmcnt({n})")
                self.lgkm = self.lgkm[len(self.lgkm) - n:] if n else []
            i = self._need(self.vm, touched, lambda e: e[1])
            if i >= 0:
                n = min(len(self.vm) - 1 - i, 63)
                w.append(f"vmcnt({n})")
                self.vm = self.vm[len(self.vm) - n:] if n else []
            if w:
                self.ins.append(Ins("s_waitcnt " + " ".join(sorted(set(w), reverse=True))))
        if I.kind == "wait":
            m = re.search(r"lgkmcnt\((\d+)\)", I.text)
            if m:
                n = int(m.group(1))
                if n == 0:
                    self.smem_pending = set()
                if not self.smem_pending:
                    self.lgkm = self.lgkm[len(self.lgkm) - n:] if n and n < len(self.lgkm) else ([] if n == 0 else self.lgkm)
            m = re.search(r"vmcnt\((\d+)\)", I.text)
            if m:
                n = int(m.group(1))
                self.vm = self.vm[len(self.vm) - n:] if n and n < len(self.vm) else ([] if n == 0 else self.vm)
        if I.kind == "ds_read":
            self.lgkm.append(set(I.dst))
        elif I.kind == "ds_write":
            self.lgkm.append(set())
        elif I.kind == "smem":
            self.smem_pending |= set(I.dst)
        elif I.kind == "vload":
            self.vm.append((I.tag, set(I.dst)))
        elif I.kind in ("vstore", "dma"):
            self.vm.append((I.tag, set()))
        self.ins.append(I)

    def vm_count_for(self, tags):
        idx = -1
        for i, e in enumerate(self.vm):
            if e[0] in tags:
                idx = i
        if idx < 0:
            return None
        return min(len(self.vm) - 1 - idx, 63)

    def wait(self, tags=(), lgkm0=False):
        parts = []
        n = self.vm_count_for(set(tags))
        if n is not None:
            parts.append(f"vmcnt({n})")
        if lgkm0:
            parts.append("lgkmcnt(0)")
        if parts:
            self("s_waitcnt " + " ".join(parts))

    def text(self):
        return "\n".join(("" if i.kind == "label" else "  ") + i.text for i in self.ins) + "\n"


def required_states(P, C):
    need = 0
    pd, cs, cd = set(P.dst), set(C.src), set(C.dst)
    if P.kind == "mfma":
        if C.kind == "mfma":
            if pd & set(C.srcAB):
                need = max(need, 8)
            if pd & set(C.srcC):
                if not (P.dst == C.srcC):
                    need = max(need, 6)
            elif pd & cd:
                need = max(need, 0)
        elif C.is_valu():
            if pd & (cs | cd):
                need = max(need, 8)
            if set(P.srcC) & cd:
                need = max(need, 3)
        elif C.kind in ("vload", "vstore", "dma", "ds_read", "ds_write"):
            if pd & (cs | cd):
                need = max(need, 8)
    if P.is_valu():
        vd = {r for r in pd if r[0] in "va" and r != "vcc"}
        sd = {r for r in pd if r[0] == "s" or r == "vcc"}
        if C.kind == "mfma":
            if vd & cs:
                need = max(need, 2)
            if "exec" in pd:
                need = max(need, 4)
        if C.is_valu():
            if P.kind == "trans" and C.kind != "trans" and vd & cs:
                need = max(need, 1)
            if P.kind == "trans" and C.kind == "trans" and vd & cs:
                need = max(need, 1)
            if C.op.startswith("v_permlane") and vd & cs:
                need = max(need, 2)
            if ("dpp" in C.text or "row_" in C.text or "quad_perm" in C.text) and vd & cs:
                need = max(need, 2)
            if C.op in ("v_readfirstlane_b32", "v_readlane_b32") and vd & cs:
                need = max(need, 1)
            if sd & cs:
                need = max(need, 2)
                if C.op in ("v_readlane_b32", "v_writelane_b32"):
                    need = max(need, 4)
            if "exec" in pd:
                need = max(need, 5)
            if "op_sel" in P.text or "sdwa" in P.text:
                if vd & (cs | cd):
                    need = max(need, 1)
        if C.kind in ("vload", "vstore", "dma") and sd & cs:
            need = max(need, 5)
        if C.kind in ("salu", "branch", "smem") and sd & cs:
            need = max(need, 1)
    if P.kind == "salu" and "m0" in pd and C.kind == "dma":
        need = max(need, 1)
    if P.kind == "vstore" and ("x4" in P.op or "x3" in P.op):
        data = set(regs_of(split_ops(P.text.split(None, 1)[1])[0 if P.op.startswith("buffer") else 1]))
        if data & cd:
            need = max(need, 2)
    if P.kind == "ds_write" and ("b128" in P.op or "b96" in P.op):
        pass
    return need


def fix_hazards(ins, window=10):
    out = []
    n_nops = 0
    for C in ins:
        if C.kind in ("label", "directive"):
            out.append(C); continue
        dist, need = 0, 0
        for P in reversed(out):
            if P.kind in ("label", "directive"):
                continue
            r = required_states(P, C)
            if r > dist:
                need = max(need, r - dist)
            dist += P.states
            if dist >= window:
                break
        if need:
            out.append(Ins(f"s_nop {need - 1}"))
            n_nops += 1
        out.append(C)
    return out, n_nops


def check_path(seq, window=10):
    bad = []
    real = [x for x in seq if x.kind not in ("label", "directive")]
    for j, C in enumerate(real):
        dist = 0
        for P in reversed(real[:j]):
            r = required_states(P, C)
            if r > dist:
                bad.append((P.text, C.text, r, dist))
            dist += P.states
            if dist >= window:
                break
    return bad


def check_branches(ins, window=10):
    labels = {x.op[:-1]: i for i, x in enumerate(ins) if x.kind == "label"}
    bad = []
    for i, x in enumerate(ins):
        if x.kind == "branch" and (x.op.startswith("s_cbranch") or x.op == "s_branch"):
            tgt = x.text.split()[1]
            j = labels[tgt]
            pre = [y for y in ins[max(0, i - 40):i + 1] if y.kind not in ("label", "directive")][-window:]
            post = [y for y in ins[j:j + 40] if y.kind not in ("label", "directive")][:window]
            for b in check_path(pre + post, window):
                bad.append((x.text,) + b)
    return bad


def interleave(P, mfmas, fillers):
    def put(f):
        if callable(f):
            f()
        elif isinstance(f, tuple):
            P(f[0], f[1])
        else:
            P(f)
    for f in fillers.get(-1, []):
        put(f)
    for k, m in enumerate(mfmas):
        P(m)
        for f in fillers.get(k, []):
            put(f)


def spread(fill, items, lo, hi):
    n = len(items)
    if n == 0:
        return
    span = hi - lo + 1
    for j, it in enumerate(items):
        s = lo + (j * span) // n
        if isinstance(it, list):
            fill.setdefault(s, []).extend(it)
        else:
            fill.setdefault(s, []).append(it)


def vr(base, n=4, t="v"):
    return f"{t}[{base}:{base + n - 1}]" if n > 1 else f"{t}{base}"
```

```python
from asmlib import *

class Tile:
    def __init__(self, kind, nblk, TT, sx, sya, syb, vx, vy, vyrd, xstride, ystride, acc, swap=False,
                 sxo_init=None, syo_init=None, rot=True, smy=None):
        self.kind, self.nblk, self.TT = kind, nblk, TT
        self.sx, self.sya, self.syb, self.vx, self.vy, self.vyrd = sx, sya, syb, vx, vy, vyrd
        self.xstride, self.ystride, self.acc, self.swap = xstride, ystride, acc, swap
        self.sxo_init, self.syo_init, self.rot, self.smy = sxo_init, syo_init, rot, smy
        self.NT = 2 * TT
        self.ybytes = 8192 * TT
        self.rowlen = self.NT * 2

def put(P, f):
    if callable(f): f()
    elif isinstance(f, tuple): P(f[0], f[1])
    elif isinstance(f, list):
        for x in f: put(P, x)
    else: P(f)

def x_voffs(P, vb, stride, srow0, L=24):
    a, b, c = L+3, L+4, L+5
    P(f"v_add_u32 v{a}, s{srow0}, v{L+1}")
    P(f"v_mul_u32_u24 v{a}, {stride}, v{a}")
    P(f"v_and_b32 v{b}, 7, v{L}\nv_xor_b32 v{b}, v{b}, v{L+2}\nv_lshlrev_b32 v{b}, 4, v{b}")
    P(f"v_xor_b32 v{c}, 64, v{b}")
    for q in range(4):
        P(f"v_add_u32 v{vb+q}, v{a}, v{b + (q & 1)}")
        if q:
            P(f"v_add_u32 v{vb+q}, {q * (8 * stride - 1024)}, v{vb+q}")

def y_voffs(P, vb, stride, scol_bytes, swave, st, TT, L=24):
    a, b, c = L+3, L+4, L+5
    P(f"s_lshl_b32 s{st}, s{swave}, 4")
    if TT == 4:
        P(f"v_add_u32 v{a}, s{st}, v{L+2}")
        P(f"v_mul_u32_u24 v{a}, {stride}, v{a}")
        P(f"v_add_u32 v{a}, s{scol_bytes}, v{a}")
        P(f"v_and_b32 v{b}, 15, v{L}\nv_lshlrev_b32 v{c}, 1, v{L+2}\nv_xor_b32 v{b}, v{b}, v{c}\nv_lshlrev_b32 v{b}, 4, v{b}")
        P(f"v_xor_b32 v{c}, 128, v{b}")
        for q in range(4):
            P(f"v_add_u32 v{vb+q}, v{a}, v{b + (q >> 1)}")
            if q:
                P(f"v_add_u32 v{vb+q}, {q * (4 * stride - 1024)}, v{vb+q}")
    else:
        P(f"v_add_u32 v{a}, s{st}, v{L+1}")
        P(f"v_mul_u32_u24 v{a}, {stride}, v{a}")
        P(f"v_add_u32 v{a}, s{scol_bytes}, v{a}")
        P(f"v_and_b32 v{b}, 7, v{L}\nv_and_b32 v{c}, 2, v{L+1}\nv_xor_b32 v{b}, v{b}, v{c}\nv_lshlrev_b32 v{b}, 4, v{b}")
        P(f"v_xor_b32 v{c}, 64, v{b}")
        P(f"v_add_u32 v{vb}, v{a}, v{b}\nv_add_u32 v{vb+1}, v{a}, v{c}\nv_add_u32 v{vb+1}, {8 * stride - 1024}, v{vb+1}")

def x_rdaddr(P, vxrd, xbase, swave, st, L=24):
    a, b = L+3, L+4
    P(f"s_lshr_b32 s{st}, s{swave}, 1\ns_lshl_b32 s{st}, s{st}, 14\ns_add_u32 s{st}, s{st}, {xbase}")
    P(f"v_and_b32 v{a}, 15, v{L}\nv_lshlrev_b32 v{b}, 7, v{a}\nv_add_u32 v{b}, s{st}, v{b}")
    P(f"v_lshrrev_b32 v{a}, 1, v{a}\nv_xor_b32 v{a}, v{a}, v{L+2}\nv_lshlrev_b32 v{a}, 4, v{a}")
    P(f"v_add_u32 v{vxrd}, v{b}, v{a}\nv_xor_b32 v{a}, 64, v{a}\nv_add_u32 v{vxrd+1}, v{b}, v{a}")
    P(f"v_add_u32 v{vxrd+2}, 0x10000, v{vxrd}\nv_add_u32 v{vxrd+3}, 0x10000, v{vxrd+1}")

def y_rdaddr(P, vyrd, ybase, swave, st, TT, L=24):
    a, b, c = L+3, L+4, L+5
    P(f"v_bfe_u32 v{a}, v{L}, 2, 2")
    P(f"v_lshlrev_b32 v{b}, 3, v{L+2}\nv_add_u32 v{b}, v{b}, v{a}\nv_lshlrev_b32 v{b}, {8 if TT == 4 else 7}, v{b}")
    P(f"v_and_b32 v{c}, 3, v{L}\nv_lshlrev_b32 v{c}, 3, v{c}\nv_add_u32 v{b}, v{b}, v{c}")
    if ybase:
        P(f"v_add_u32 v{b}, {ybase}, v{b}")
    if TT == 4:
        P(f"v_and_b32 v{c}, 1, v{L+2}\nv_lshlrev_b32 v{c}, 2, v{c}\nv_or_b32 v{a}, v{a}, v{c}")
        P(f"s_and_b32 s{st}, s{swave}, 1\ns_lshl_b32 s{st}, s{st}, 2")
    else:
        P(f"v_lshrrev_b32 v{a}, 1, v{a}\nv_and_b32 v{c}, 1, v{L+2}\nv_lshlrev_b32 v{c}, 1, v{c}\nv_or_b32 v{a}, v{a}, v{c}")
        P(f"s_and_b32 s{st}, s{swave}, 1\ns_lshl_b32 s{st}, s{st}, 1")
    P(f"v_xor_b32 v{a}, s{st}, v{a}")
    for tt in range(TT):
        P(f"v_xor_b32 v{c}, {tt}, v{a}\nv_lshlrev_b32 v{c}, 5, v{c}\nv_add_u32 v{vyrd+tt}, v{b}, v{c}")


class Gemm:
    def __init__(self, P, tiles, XB, YB, vxrd, sXO, sXO2, sYO, sMX, afY, afX, LA=2, xrot=0, stamp=None, ylook=4):
        self.P, self.tiles = P, tiles
        self.XB, self.YB, self.vxrd = XB, YB, vxrd
        self.sXO, self.sXO2, self.sYO, self.sMX = sXO, sXO2, sYO, sMX
        self.afY, self.afX, self.LA, self.xrot = afY, afX, LA, xrot
        self.stamp = stamp or (lambda: None)
        self.ylook = ylook
        self.blocks = [(T, b) for T in tiles for b in range(T.nblk)]
        self.NB = len(self.blocks)
        self.yoff, pos = [], 0
        for (T, b) in self.blocks:
            if pos + T.ybytes > 65536: pos = 0
            self.yoff.append(pos); pos = (pos + T.ybytes) % 65536
        self.yfree = []
        for g, (T, b) in enumerate(self.blocks):
            f = -2
            for e in range(g):
                if self.yoff[e] < self.yoff[g] + T.ybytes and self.yoff[g] < self.yoff[e] + self.blocks[e][0].ybytes:
                    f = max(f, e - 1)
            self.yfree.append(f)
        self.start = []
        s = 0
        for (T, b) in self.blocks:
            self.start.append(s); s += 8 * T.rowlen
        self.nslots = s
        self.fill = {}

    def xbuf(self, beta): return (beta + self.xrot) % 3
    def yfrag(self, beta, t, s): return self.afY + (beta & 1) * 64 + (t * 2 + s) * 4
    def xfrag(self, i, s): return self.afX + ((i & 3) * 2 + s) * 4
    def slot(self, beta, row, k=0): return self.start[beta] + row * self.blocks[beta][0].rowlen + k
    def bar_slot(self, beta):
        return self.slot(beta, 8 - self.LA) - 1

    def dma_x(self, beta):
        T, b = self.blocks[beta]
        sXO, sXO2 = self.sXO, self.sXO2
        pre = []
        if b == 0:
            if T.sxo_init is not None: pre = [f"s_mov_b32 s{sXO}, {T.sxo_init}"]
        elif T.rot:
            pre = [f"s_add_u32 s{sXO}, s{sXO}, 128", f"s_cmp_eq_u32 s{sXO}, {T.nblk * 128}", f"s_cselect_b32 s{sXO}, 0, s{sXO}"]
        else:
            pre = [f"s_add_u32 s{sXO}, s{sXO}, 128"]
        base = self.XB + self.xbuf(beta) * 32768
        L = []
        for g in range(2):
            pre = pre + [f"s_add_u32 m0, s{self.sMX}, {base + g * 4096}"]
            if g == 0:
                pre.append(f"s_add_u32 s{sXO2}, s{sXO}, {32 * T.xstride}")
            for q in range(4):
                L.append(pre + [(f"buffer_load_dwordx4 v{T.vx+q}, s[{T.sx}:{T.sx+3}], s{sXO2 if g else sXO} offen offset:{q*1024} lds", f"X{beta}")])
                pre = []
        return L

    def dma_y(self, beta):
        T, b = self.blocks[beta]
        sYO = self.sYO
        pre = []
        if b == 0:
            if T.syo_init is not None: pre = [f"s_mov_b32 s{sYO}, {T.syo_init}"]
        elif T.rot:
            pre = [f"s_add_u32 s{sYO}, s{sYO}, {64 * T.ystride}", f"s_cmp_eq_u32 s{sYO}, {T.nblk * 64 * T.ystride}", f"s_cselect_b32 s{sYO}, 0, s{sYO}"]
        else:
            pre = [f"s_add_u32 s{sYO}, s{sYO}, {64 * T.ystride}"]
        base = self.YB + self.yoff[beta]
        L = []
        for g in range(2):
            pre = [f"s_add_u32 m0, s{T.smy}, {base + g * T.ybytes // 2}"] + pre
            sr = T.syb if g else T.sya
            for q in range(T.TT):
                L.append(pre + [(f"buffer_load_dwordx4 v{T.vy+q}, s[{sr}:{sr+3}], s{sYO} offen offset:{q*1024} lds", f"Y{beta}")])
                pre = []
        return L

    def rd_x(self, beta, i):
        xb = self.xbuf(beta)
        return [f"ds_read_b128 {vr(self.xfrag(i, s), 4, 'a')}, v{self.vxrd + s + (2 if xb == 2 else 0)} offset:{i*2048 + (xb & 1)*32768}" for s in range(2)]

    def rd_y(self, beta):
        T, b = self.blocks[beta]
        L = []
        u = T.TT * 256
        for t in range(T.NT):
            sub, tt = t // T.TT, t % T.TT
            for s in range(2):
                for hf in range(2):
                    L.append(f"ds_read_b64_tr_b16 {vr(self.yfrag(beta, t, s) + 2*hf, 2, 'a')}, v{T.vyrd+tt} offset:{self.yoff[beta] + sub*T.ybytes//2 + s*8*u + hf*u}")
        return L

    def prologue_dma(self):
        P = self.P
        self.xi, self.yi = 0, 0
        put(P, self.dma_x(0)); put(P, self.dma_y(0)); put(P, self.dma_y(1)); put(P, self.dma_x(1))
        self.xi, self.yi = 2, 2
        while self.yi < self.NB and self.yfree[self.yi] == -2 and self.yi <= 2:
            put(P, self.dma_y(self.yi)); self.yi += 1
        put(P, self.dma_x(2)); self.xi = 3

    def add(self, items, lo, hi):
        spread(self.fill, items, lo, hi)

    def at(self, slot, item):
        self.fill.setdefault(slot, []).append(item)

    def plan(self, final_barrier=False, after_bar=None):
        P, LA, NB = self.P, self.LA, self.NB
        T0 = self.blocks[0][0]
        early = self.slot(0, 2) - 1
        def mkbar(p):
            def bar():
                self.stamp()
                P.wait([f"X{p+1}", f"Y{p+2}"], lgkm0=True); P("s_barrier")
                self.stamp()
            return bar
        for p in range(-1, NB):
            if p == NB - 1 and not final_barrier:
                break
            bs = early if p == -1 else self.bar_slot(p)
            nxt = self.bar_slot(p + 1) if p + 1 < NB else self.nslots - 1
            self.at(bs, mkbar(p))
            D = []
            while self.yi < NB and self.yfree[self.yi] <= p and self.yi <= p + self.ylook:
                D += self.dma_y(self.yi); self.yi += 1
            while self.xi < NB and self.xi <= p + 3:
                D += self.dma_x(self.xi); self.xi += 1
            if after_bar:
                D += after_bar(p) or []
            hi = min(nxt - 2, bs + 1 + 8 * len(D))
            if p == -1: hi = min(hi, bs + 1 + 4 * len(D))
            self.add(D, bs + 1, hi)
        for beta, (T, b) in enumerate(self.blocks):
            rl = T.rowlen
            for i in range(8):
                j = i + LA
                if j < 8: rr = self.rd_x(beta, j)
                elif beta + 1 < NB: rr = self.rd_x(beta + 1, j - 8)
                else: rr = []
                self.add(rr, self.slot(beta, i, 1), self.slot(beta, i, rl // 2))
            if beta + 1 < NB:
                lo = early + 1 if beta == 0 else self.slot(beta, 0)
                self.add(self.rd_y(beta + 1), lo, self.bar_slot(beta) - 6)

    def emit(self):
        P = self.P
        P.wait(["X0", "Y0"]); P("s_barrier")
        self.stamp()
        ry, rx = self.rd_y(0), [self.rd_x(0, i) for i in range(self.LA)]
        put(P, rx[0]); put(P, ry); put(P, rx[1:])
        mf = []
        for beta, (T, b) in enumerate(self.blocks):
            for i in range(8):
                for t in range(T.NT):
                    for s in range(2):
                        ty, r = T.acc(i, t)
                        d = vr(r, 4, ty)
                        c = "0" if (b == 0 and s == 0) else d
                        y, x = vr(self.yfrag(beta, t, s), 4, "a"), vr(self.xfrag(i, s), 4, "a")
                        a_, b_ = (x, y) if T.swap else (y, x)
                        mf.append(f"v_mfma_f32_16x16x32_bf16 {d}, {a_}, {b_}, {c}")
        for k, m in enumerate(mf):
            P(m)
            for f in self.fill.get(k, []):
                put(P, f)
```

```python
from asmlib import *
from gemm import *
import struct, math

def f32bits(x):
    return struct.unpack("<I", struct.pack("<f", x))[0]

WS_K = 0
WS_V = 16 << 20
WS_W = 32 << 20
WS_A = 48 << 20
WS_G = 72 << 20
WS_ST = 80 << 20
WS_BYTES = 256 << 20
NKS = 182

OPT = dict(stamp=False, rot=False, touch=True, LA=2, ipf=True)

YB = 0
XB = 65536

S_X1, S_X2, S_YA1, S_YB1, S_YA2, S_YB2, S_W = 36, 40, 44, 48, 52, 56, 60
sWAVE, sXO, sXO2, sYO, sMX, sMY, sT, sMY2 = 68, 69, 70, 71, 72, 73, 74, 75
sCB, sRB, sCB2, sRB2, sROT, sROT2, sC0, sC1 = 76, 77, 78, 79, 80, 81, 82, 83
sXO_n, sYO_n, sJ, sXCD, sC4 = 84, 85, 86, 87, 88
vST2, vST1, vY2, vX1, vY1, vX2, vXRD, vYRD, vYRD2, vTCH = 0, 1, 2, 4, 8, 12, 16, 20, 30, 24

def acc(i, t):
    if i < 7:
        return ("v", 32 + (i * 8 + t) * 4)
    return ("a", 224 + t * 4)
def acc_gu_k(i, t):
    return acc(i, 2 * t + 1) if i < 7 else acc(7, t)
def acc_gu_v(i, t):
    return acc(2 * (i >> 1) + 1, (i & 1) * 4 + t)

def srd(P, d, plo, nbytes, add=0):
    if add:
        P(f"s_add_u32 s{d}, s{plo}, {add}\ns_addc_u32 s{d+1}, s{plo+1}, 0")
    else:
        P(f"s_mov_b32 s{d}, s{plo}\ns_mov_b32 s{d+1}, s{plo+1}")
    P(f"s_mov_b32 s{d+2}, {nbytes - add}\ns_mov_b32 s{d+3}, 0x20000")

class Stamper:
    def __init__(self, P, on, areg, vtmp, swave, sw, s0=90):
        self.P, self.on, self.n, self.areg, self.vtmp, self.swave, self.sw, self.s0 = P, on, 0, areg, vtmp, swave, sw, s0
    def __call__(self):
        if not self.on: return
        P = self.P
        if self.n > 0:
            P(f"v_accvgpr_write_b32 a{self.areg + self.n - 1}, s{self.s0}")
        P(f"s_memtime s[{self.s0}:{self.s0+1}]")
        self.n += 1
    def out(self):
        if not self.on: return
        P = self.P
        self(); self()
        P(f"s_lshl_b32 s5, s2, 2\ns_add_u32 s5, s5, s{self.swave}\ns_lshl_b32 s5, s5, 8\ns_add_u32 s5, s5, {WS_ST}")
        P(f"v_mov_b32 v{self.vtmp}, 0\ns_mov_b64 exec, 1")
        for i in range(self.n - 1):
            P(f"buffer_store_dword a{self.areg+i}, v{self.vtmp}, s[{self.sw}:{self.sw+3}], s5 offen offset:{i*4}")
        import sys
        print("stamps:", self.n - 1, file=sys.stderr)

def store(d, ty, vst, soff, imm):
    return [f"s_mov_b32 s{sT}, {soff}", (f"buffer_store_dwordx4 {vr(d, 4, ty)}, v{vst}, s[{S_W}:{S_W+3}], s{sT} offen offset:{imm}", "ST")]

def cvt4(d, a, b):
    return [f"v_cvt_pk_bf16_f32 v{d}, v{a}, v{a+1}", f"v_cvt_pk_bf16_f32 v{d+1}, v{a+2}, v{a+3}",
            f"v_cvt_pk_bf16_f32 v{d+2}, v{b}, v{b+1}", f"v_cvt_pk_bf16_f32 v{d+3}, v{b+2}, v{b+3}"]

def kv_pack(kind, i):
    L, S = [], []
    if kind == "K":
        for sub in range(2):
            for m in range(2):
                t = sub*4 + 2*m
                if i < 7:
                    d = acc(i, t)[1]
                    L += cvt4(d, d, acc(i, t+1)[1])
                    S.append(store(d, "v", vST1, sub*524288 + i*4096, m*1024))
                else:
                    L += [f"v_accvgpr_read_b32 v{4+r}, a{acc(i, t)[1]+r}" for r in range(8)]
                    L += cvt4(4, 4, 8)
                    park = 208 + (sub*2 + m)*4
                    L += [f"v_accvgpr_write_b32 a{park+r}, v{4+r}" for r in range(4)]
                    S.append(store(park, "a", vST1, sub*524288 + i*4096, m*1024))
    elif i & 1:
        for t in range(8):
            d = acc(i-1, t)[1]
            if i < 7:
                L += cvt4(d, d, acc(i, t)[1])
            else:
                tmp = 4 + (t & 1)*4
                L += [f"v_accvgpr_read_b32 v{tmp+r}, a{acc(i, t)[1]+r}" for r in range(4)]
                L += cvt4(d, d, tmp)
            S.append(store(d, "v", vST1, (t >> 2)*524288 + (i >> 1)*8192, (t & 3)*1024))
    return L, S

def gu_epi(accf, i):
    L = []
    d = [4, 8][i & 1]
    for h in range(2):
        (ty, g), (_, u) = accf(i, h), accf(i, 2 + h)
        if ty == "a":
            L += [f"v_accvgpr_read_b32 v{24+r}, a{g+r}" for r in range(4)]
            L += [f"v_accvgpr_read_b32 v{20+r}, a{u+r}" for r in range(4)]
            g, u = 24, 20
        t = 12
        L += [f"v_mul_f32 v{t+r}, s{sC1}, v{g+r}" for r in range(4)]
        L += [f"v_exp_f32 v{t+r}, v{t+r}" for r in range(4)]
        L += [f"v_mul_f32 v{g+r}, v{g+r}, v{u+r}" for r in range(4)]
        L += [f"v_add_f32 v{t+r}, 1.0, v{t+r}" for r in range(4)]
        L += [f"v_rcp_f32 v{t+r}, v{t+r}" for r in range(4)]
        L += [f"v_mul_f32 v{g+r}, v{g+r}, v{t+r}" for r in range(4)]
        L += [f"v_cvt_pk_bf16_f32 v{d+2*h}, v{g}, v{g+1}", f"v_cvt_pk_bf16_f32 v{d+2*h+1}, v{g+2}, v{g+3}"]
    L.append(store(d, "v", vST2, (i >> 2)*NKS*4096, (i & 3)*1024))
    return L

def mod10(P, s):
    P(f"s_sub_u32 s6, s{s}, 10\ns_cmp_ge_u32 s{s}, 10\ns_cselect_b32 s{s}, s6, s{s}")

def gen_prog(P, kind):
    st = Stamper(P, OPT["stamp"], 160, 31, sWAVE, S_W)
    rot = OPT["rot"]
    wptr = 14 if kind == "K" else 16
    srd(P, S_YA1, wptr, 512*4096*2); srd(P, S_YB1, wptr, 512*4096*2, add=256)
    T1 = Tile(kind, 8, 4, S_X1, S_YA1, S_YB1, vX1, vY1, vYRD, 1024, 8192, acc, swap=(kind == "V"), rot=rot, smy=sMY)
    accg = acc_gu_k if kind == "K" else acc_gu_v
    T2 = Tile("GU", 10, 2, S_X2, S_YA2, S_YB2, vX2, vY2, vYRD2, 1280, 3456, accg,
              sxo_init=f"s{sXO_n}", syo_init=f"s{sYO_n}", rot=rot, smy=sMY2)
    G = Gemm(P, [T1, T2], XB, YB, vXRD, sXO, sXO2, sYO, sMX, 0, 128, LA=OPT["LA"], stamp=st)
    st()
    G.prologue_dma()
    if OPT["touch"]:
        P(f"s_lshl_b32 s5, s{sRB}, 8\ns_lshl_b32 s6, s{sC4}, 6\ns_add_u32 s5, s5, s6")
        P(f"v_add_u32 v27, s5, v24\nv_lshlrev_b32 v27, 10, v27")
        P(f"s_add_u32 s5, s{sWAVE}, 3\ns_lshl_b32 s5, s5, 7")
        P(f"buffer_load_dword a207, v27, s[{S_X1}:{S_X1+3}], s5 offen", "TCH")
        P(f"v_bfe_u32 v28, v24, 2, 3\nv_lshrrev_b32 v29, 5, v24\nv_lshlrev_b32 v29, 6, v29\nv_add_u32 v28, v28, v29")
        P(f"s_lshl_b32 s5, s{sRB}, 3\ns_lshl_b32 s6, s{sWAVE}, 7\ns_add_u32 s5, s5, s6\ns_add_u32 s5, s5, 128")
        P(f"v_add_u32 v28, s5, v28\nv_lshlrev_b32 v28, 13, v28\nv_and_b32 v29, 3, v24\nv_lshlrev_b32 v29, 7, v29\nv_add_u32 v28, v28, v29")
        P(f"s_lshl_b32 s5, s{sCB}, 9")
        P(f"buffer_load_dword a207, v28, s[{S_YA1}:{S_YA1+3}], s5 offen", "TCH")
        P(f"s_mov_b32 s5, {7*128}")
        P(f"buffer_load_dword a207, v27, s[{S_X1}:{S_X1+3}], s5 offen", "TCH")
    x_rdaddr(P, vXRD, XB, sWAVE, 5)
    y_rdaddr(P, vYRD, YB, sWAVE, 5, 4)
    srd(P, S_X2, 8, 2048*640*2)
    srd(P, S_YA2, 22, 640*1728*2); srd(P, S_YB2, 24, 640*1728*2)
    P(f"s_mov_b32 s{sC1}, {hex(f32bits(-math.log2(math.e)))}")
    P(f"s_lshl_b32 s{sMY2}, s{sWAVE}, 11")
    P(f"s_min_u32 s5, s{sJ}, 26\ns_mul_i32 s6, s{sXCD}, 27\ns_add_u32 s5, s5, s6")
    P(f"s_lshr_b32 s{sCB2}, s5, 3\ns_and_b32 s{sRB2}, s5, 7")
    if rot:
        P(f"s_and_b32 s5, s{sCB2}, 3\ns_mul_i32 s5, s5, 3\ns_add_u32 s{sROT2}, s5, s{sRB2}"); mod10(P, sROT2)
        P(f"s_lshl_b32 s{sXO_n}, s{sROT2}, 7\ns_mul_i32 s{sYO_n}, s{sROT2}, {64*3456}")
    else:
        P(f"s_mov_b32 s{sXO_n}, 0\ns_mov_b32 s{sYO_n}, 0")
    P(f"s_lshl_b32 s5, s{sRB2}, 8\ns_lshl_b32 s6, s{sWAVE}, 6\ns_add_u32 s5, s5, s6")
    x_voffs(P, vX2, 1280, 5)
    P(f"s_lshl_b32 s5, s{sCB2}, 7")
    y_voffs(P, vY2, 3456, 5, sWAVE, sT, 2)
    P(f"s_lshl_b32 s5, s{sCB}, 20\ns_lshl_b32 s6, s{sRB}, 16\ns_add_u32 s5, s5, s6")
    P(f"s_lshr_b32 s6, s{sWAVE}, 1\ns_lshl_b32 s6, s6, 15\ns_add_u32 s5, s5, s6")
    P(f"s_and_b32 s6, s{sWAVE}, 1\ns_lshl_b32 s6, s6, {11 if kind == 'K' else 12}\ns_add_u32 s5, s5, s6")
    if kind == "V": P(f"s_add_u32 s5, s5, {WS_V}")
    P(f"v_lshlrev_b32 v27, 4, v24\nv_add_u32 v{vST1}, s5, v27")
    P(f"s_lshl_b32 s5, s{sRB2}, 2\ns_and_b32 s6, s{sWAVE}, 2\ns_add_u32 s5, s5, s6\ns_mul_i32 s5, s5, {NKS}")
    P(f"s_lshl_b32 s6, s{sCB2}, 1\ns_add_u32 s5, s5, s6\ns_and_b32 s6, s{sWAVE}, 1\ns_add_u32 s5, s5, s6")
    P(f"s_add_u32 s5, s5, 128\ns_lshl_b32 s5, s5, 12\ns_add_u32 s5, s5, {WS_A}")
    P(f"v_add_u32 v{vST2}, s5, v27")
    y_rdaddr(P, vYRD2, YB, sWAVE, 5, 2)
    tch2 = []
    if OPT["touch"]:
        P(f"s_mul_i32 s5, s{sJ}, 81920\ns_lshl_b32 s6, s{sWAVE}, 13\ns_add_u32 s5, s5, s6")
        P(f"v_lshlrev_b32 v27, 7, v24\nv_add_u32 v25, s5, v27")
        P(f"s_mul_i32 s5, s{sRB2}, 80\ns_mul_i32 s6, s{sWAVE}, 20\ns_add_u32 s5, s5, s6")
        P(f"v_min_u32 v27, 19, v24\nv_add_u32 v27, s5, v27\nv_mul_u32_u24 v27, 3456, v27")
        P(f"s_lshl_b32 s5, s{sCB2}, 7\nv_add_u32 v26, s5, v27")
        for n in range(3):
            tch2.append([f"s_mov_b32 s{sT}, {n*32768}", (f"buffer_load_dword a207, v25, s[{S_X2}:{S_X2+3}], s{sT} offen", "TCH")])
        tch2.append((f"buffer_load_dword a207, v26, s[{S_YA2}:{S_YA2+3}], 0 offen", "TCH"))
        tch2.append((f"buffer_load_dword a207, v26, s[{S_YB2}:{S_YB2+3}], 0 offen", "TCH"))
    G.plan(after_bar=lambda p: tch2 if p == 1 else None)
    stores = []
    carry = None
    for i in range(8):
        L, S = kv_pack(kind, i)
        stores += S
        if not L: continue
        span = 16 if kind == "K" else 32
        if i < 7:
            G.add(L, G.slot(7, i+1, 1), G.slot(7, i+1, span-1))
        else:
            carry = L
            G.add(L, G.slot(8, 0, 4), G.slot(8, 0, 4 + 36))
    if kind == "V":
        G.at(G.slot(8, 0) - 1, lambda: P(f"s_cmp_ge_u32 s{sJ}, 27\ns_cbranch_scc1 P1_idle"))
    G.add(stores, G.slot(8, 0, 2), G.slot(17, 0))
    for i in range(7):
        G.add(gu_epi(accg, i), G.slot(17, i+1, 1), G.slot(17, i+1, 7))
    G.emit()
    put(P, gu_epi(accg, 7))
    st(); P("s_waitcnt vmcnt(0)"); st.out()
    P("s_endpgm")
    return carry, stores


def gen_p1():
    P = Prog()
    P("s_cmp_ge_u32 s2, 256\ns_cbranch_scc1 P1_end")
    P("s_load_dwordx16 s[8:23], s[0:1], 0\ns_load_dwordx8 s[24:31], s[0:1], 64\ns_load_dwordx4 s[32:35], s[0:1], 96")
    P("v_lshrrev_b32 v27, 6, v0\nv_and_b32 v24, 63, v0")
    P(f"v_readfirstlane_b32 s{sWAVE}, v27")
    P("v_lshrrev_b32 v25, 3, v24\nv_lshrrev_b32 v26, 4, v24")
    P(f"s_and_b32 s{sXCD}, s2, 7\ns_lshr_b32 s{sJ}, s2, 3\ns_lshr_b32 s3, s{sJ}, 4")
    P(f"s_and_b32 s4, s{sJ}, 1\ns_bfe_u32 s{sRB}, s{sJ}, 0x30001")
    P(f"s_lshl_b32 s{sCB}, s{sXCD}, 1\ns_add_u32 s{sCB}, s{sCB}, s4")
    P(f"s_lshl_b32 s{sC4}, s3, 1\ns_add_u32 s{sC4}, s{sC4}, s4")
    if OPT["rot"]:
        P(f"s_lshl_b32 s5, s{sC4}, 1\ns_add_u32 s{sROT}, s5, s{sRB}\ns_and_b32 s{sROT}, s{sROT}, 7")
        P(f"s_lshl_b32 s{sXO}, s{sROT}, 7\ns_lshl_b32 s{sYO}, s{sROT}, 19")
    else:
        P(f"s_mov_b32 s{sXO}, 0\ns_mov_b32 s{sYO}, 0")
    P(f"s_lshl_b32 s{sMX}, s{sWAVE}, 13\ns_lshl_b32 s{sMY}, s{sWAVE}, 12")
    P(f"s_lshl_b32 s5, s{sRB}, 8\ns_lshl_b32 s6, s{sWAVE}, 6\ns_add_u32 s5, s5, s6")
    x_voffs(P, vX1, 1024, 5)
    P(f"s_lshl_b32 s5, s{sCB}, 9")
    y_voffs(P, vY1, 8192, 5, sWAVE, sT, 4)
    srd(P, S_X1, 10, 2048*512*2)
    srd(P, S_W, 34, WS_BYTES)
    P("s_cmp_eq_u32 s3, 1\ns_cbranch_scc1 P1_progB")
    gen_prog(P, "K")
    P("P1_progB:")
    P.lgkm, P.vm, P.smem_pending = [], [], set()
    carry, stores = gen_prog(P, "V")
    P("P1_idle:")
    P.lgkm, P.vm, P.smem_pending = [], [], set()
    P("s_nop 7")
    put(P, carry)
    put(P, stores)
    P("s_waitcnt vmcnt(0) lgkmcnt(0)\ns_barrier")
    P(f"s_mul_i32 s7, s{sXCD}, 5\ns_add_u32 s7, s7, s{sJ}\ns_sub_u32 s7, s7, 27")
    srd(P, S_YA1, 18, 4096*640*2)
    srd(P, S_YB1, 26, 1728*640*2)
    P("v_mbcnt_lo_u32_b32 v24, -1, 0\nv_mbcnt_hi_u32_b32 v24, -1, v24")
    P(f"s_mul_i32 s5, s{sWAVE}, 10240\nv_lshlrev_b32 v25, 4, v24\nv_add_u32 v25, s5, v25")
    P("v_lshrrev_b32 v26, 2, v24\nv_mul_u32_u24 v26, 1280, v26\nv_and_b32 v27, 3, v24\nv_lshlrev_b32 v27, 3, v27\nv_add_u32 v26, v26, v27")
    P(f"s_mul_i32 s6, s{sWAVE}, 320\nv_add_u32 v26, s6, v26")
    for n in range(1, 4):
        P(f"v_add_u32 v{26+n}, {n*40960}, v26")
    def load_ks(n, buf):
        P(f"s_add_u32 s6, s7, {40*n}\ns_cmp_ge_u32 s6, 128\ns_cbranch_scc1 P1_ld{n}b")
        for which, lab in ((S_YA1, "a"), (S_YB1, "b")):
            if lab == "b":
                P(f"P1_ld{n}b:\ns_sub_u32 s6, s6, 128")
            P("s_mul_i32 s6, s6, 40960")
            for c in range(10):
                if c % 4 == 0:
                    P(f"s_add_u32 m0, s5, {buf*40960 + c*1024}\ns_add_u32 s3, s6, {c*1024}")
                P(f"buffer_load_dwordx4 v25, s[{which}:{which+3}], s3 offen offset:{(c % 4)*1024} lds")
            if lab == "a":
                P(f"s_branch P1_ld{n}e")
        P(f"P1_ld{n}e:")
    def conv_ks(n, buf):
        for f in range(10):
            for hf in range(2):
                P(f"ds_read_b64_tr_b16 {vr(32 + f*4 + hf*2, 2)}, v{26+buf} offset:{f*32 + hf*16*1280}")
        P(f"s_add_u32 s6, s7, {40*n}\ns_mul_i32 s6, s6, 40960\ns_add_u32 s6, s6, {WS_W}")
        for f in range(10):
            if f % 4 == 0 and f:
                P("s_add_u32 s6, s6, 4096")
            P(f"buffer_store_dwordx4 {vr(32 + f*4)}, v25, s[{S_W}:{S_W+3}], s6 offen offset:{(f % 4)*1024}")
    for n in range(4): load_ks(n, n)
    P("s_waitcnt vmcnt(0)\ns_barrier")
    conv_ks(0, 0)
    P("s_cmp_ge_u32 s7, 22\ns_cbranch_scc1 P1_no5")
    P("s_barrier")
    load_ks(4, 0)
    P("P1_no5:")
    P.lgkm, P.vm = [], []
    for n in range(1, 4): conv_ks(n, n)
    P("s_cmp_ge_u32 s7, 22\ns_cbranch_scc1 P1_gate")
    P("s_waitcnt vmcnt(0)\ns_barrier")
    conv_ks(4, 0)
    P("s_endpgm")
    P("P1_gate:")
    P("s_cmp_lt_u32 s7, 24\ns_cbranch_scc1 P1_end")
    P.lgkm, P.vm = [], []
    srd(P, S_YA1, 28, 1280)
    P(f"s_sub_u32 s5, s7, 24\ns_lshl_b32 s5, s5, 7\ns_lshl_b32 s6, s{sWAVE}, 5\ns_add_u32 s5, s5, s6")
    P("v_and_b32 v25, 15, v24\nv_lshrrev_b32 v26, 4, v24\nv_lshlrev_b32 v26, 4, v26")
    P("v_add_u32 v25, s5, v25\nv_lshlrev_b32 v27, 2, v25")
    P("v_mul_u32_u24 v25, 1280, v25\nv_add_u32 v25, v25, v26")
    P("s_mov_b32 s6, 20480")
    for ks in range(20):
        P(f"buffer_load_dwordx4 {vr(128+ks*4)}, v26, s[{S_YA1}:{S_YA1+3}], 0 offen offset:{ks*64}")
    for rt in range(2):
        for ks in range(20):
            P(f"buffer_load_dwordx4 {vr(ks*4 + rt*80, 4, 'a')}, v25, s[{S_X2}:{S_X2+3}], {'s6' if rt else '0'} offen offset:{ks*64}")
    for rt in range(2):
        for ks in range(20):
            P(f"v_mfma_f32_16x16x32_bf16 {vr(4+rt*4)}, {vr(128+ks*4)}, {vr(ks*4 + rt*80, 4, 'a')}, {vr(4+rt*4) if ks else '0'}")
    for rt in range(2):
        r = 4 + rt*4
        P(f"v_mul_f32 v{r}, s{sC1}, v{r}\nv_exp_f32 v{r}, v{r}\nv_add_f32 v{r}, 1.0, v{r}\nv_rcp_f32 v{r}, v{r}")
    P(f"s_mov_b32 s6, {WS_G}")
    P("s_mov_b64 exec, 0xffff")
    for rt in range(2):
        P(f"buffer_store_dword v{4+rt*4}, v27, s[{S_W}:{S_W+3}], s6 offen offset:{rt*64}")
    P("P1_end:")
    P("s_endpgm")
    return P
```

```python
from asmlib import *
from gemm import *
from p1 import f32bits, srd, Stamper, WS_K, WS_V, WS_A, WS_G, WS_BYTES, NKS
import math

OPT = dict(stamp=False, LA=2, bias=16.0, force_slow=False)

S_X, S_YA, S_YB, S_K, S_V, S_W = 36, 40, 44, 48, 52, 56
sWAVE, sXO, sXO2, sYO, sMX, sMY, sT, sC0 = 60, 61, 62, 63, 64, 65, 66, 67
sHEAD, sI, sRG, sPAR, sM, sE, sO, sLIM, sLIM1, sCNT = 68, 69, 70, 71, 72, 73, 74, 75, 76, 77
sNINF, sMASK, sBIAS, sBIG, sSLOT, sNB = 78, 79, 80, 81, 82, 83
sCM = 84
sST = 92
vRD, vDK, vDV, vZ, vOR, vSTA, vSTB, vML = 0, 1, 2, 3, 4, 5, 6, 7
vT = 8
vU = 16
vX, vXRD, vY, vYRD, vQW = 8, 12, 16, 18, 20
def L_(j): return 32 + 4*j
def M_(j): return 48 + 4*j
def P_(b, j): return 64 + 16*b + 4*j
def S_(kt, j): return 96 + (2*j + kt)*4
def O_(dt, j): return 128 + (dt*4 + j)*4
def Q_(qb, j, ks): return qb*64 + (j*4 + ks)*4
def K_(kt, ks): return 128 + (kt*4 + ks)*4
def V_(dt): return 160 + dt*4
aONE, aG = 192, 196
aSTAMP = 208
XB, YB = 0, 98304
SPARE = 131072

def mfma(d, dt, a, at, b, bt, c):
    return f"v_mfma_f32_16x16x32_bf16 {vr(d, 4, dt)}, {vr(a, 4, at)}, {vr(b, 4, bt)}, {c}"

def qk_list(qb, czero):
    L = []
    for j in range(4):
        for kt in range(2):
            for ks in range(4):
                c = vr(S_(kt, j)) if ks else ("0" if czero else vr(M_(j)))
                L.append(mfma(S_(kt, j), "v", K_(kt, ks), "a", Q_(qb, j, ks), "a", c))
    return L

def pv_list(pb, czero):
    L = []
    for j in range(4):
        L.append(mfma(L_(j), "v", aONE, "a", P_(pb, j), "v", "0" if czero else vr(L_(j))))
        for dt in range(8):
            L.append(mfma(O_(dt, j), "v", V_(dt), "a", P_(pb, j), "v", "0" if czero else vr(O_(dt, j))))
    return L

def rd_k(off): return [f"ds_read_b128 {vr(K_(kt, ks), 4, 'a')}, v{vRD} offset:{off + (kt*4 + ks)*1024}" for kt in range(2) for ks in range(4)]
def rd_v(off): return [f"ds_read_b128 {vr(V_(dt), 4, 'a')}, v{vRD} offset:{off + 16384 + dt*1024}" for dt in range(8)]

def dma4(v, s, so):
    return [(f"buffer_load_dwordx4 v{v}, s[{s}:{s+3}], s{so} offen offset:{q*1024} lds", "KV") for q in range(4)]

def dma_stage(etype):
    sp = sE if etype else sO
    base = 32768 if etype else 0
    dv, dk = dma4(vDV, S_V, sp), dma4(vDK, S_K, sp)
    L = [[f"s_add_u32 m0, s{sM}, {base + 16384}"], dv[0], dv[1], dv[2], dv[3],
         [f"s_add_u32 s{sp}, s{sp}, 32768", f"s_cmp_eq_u32 s{sp}, s{sLIM if etype else sLIM1}"],
         [f"s_cselect_b32 s{sp}, {0 if etype else 16384}, s{sp}", f"s_add_u32 m0, s{sM}, {base}"],
         dk[0], dk[1], dk[2], dk[3]]
    if etype:
        L.append([f"s_xor_b32 s{sM}, s{sM}, 0x10000"])
    return L

def mask_ops(kt, j):
    c = [f"v_cmp_lt_i32 s[{sCM+2*r}:{sCM+2*r+1}], {16*(j-kt) - r + 4}, v{vZ}" for r in range(4)]
    m = [f"v_cndmask_b32 v{S_(kt,j)+r}, v{S_(kt,j)+r}, v{vT+7}, s[{sCM+2*r}:{sCM+2*r+1}]" for r in range(4)]
    return c, m

def softmax_units(pb, masked):
    U = []
    for j in range(4):
        for kt in range(2):
            tau = 2*j + kt
            t = vT + 0
            if masked:
                c, m = mask_ops(kt, j)
                U += [(tau, c[:2]), (tau, c[2:]), (tau, m[:2]), (tau, m[2:])]
            for r in range(4):
                U.append((tau, [f"v_exp_f32 v{t+r}, v{S_(kt,j)+r}"]))
            U.append((tau, [f"v_cvt_pk_bf16_f32 v{P_(pb,j)+2*kt}, v{t}, v{t+1}", f"v_cvt_pk_bf16_f32 v{P_(pb,j)+2*kt+1}, v{t+2}, v{t+3}"]))
            if kt == 1:
                p = P_(pb, j)
                first = f"v_or_b32 v{vOR}, v{p}, v{p+1}" if j == 0 else f"v_or3_b32 v{vOR}, v{p}, v{p+1}, v{vOR}"
                U.append((tau, [first, f"v_or3_b32 v{vOR}, v{p+2}, v{p+3}, v{vOR}"]))
    return U

def rowmax(j, t):
    a, b = S_(0, j), S_(1, j)
    return [f"v_max3_f32 v{t}, v{a}, v{a+1}, v{a+2}", f"v_max3_f32 v{t+1}, v{a+3}, v{b}, v{b+1}",
            f"v_max3_f32 v{t}, v{t}, v{b+2}, v{b+3}", f"v_max_f32 v{t}, v{t}, v{t+1}",
            f"v_mov_b32 v{t+1}, v{t}", f"v_permlane32_swap_b32 v{t}, v{t+1}", f"v_max_f32 v{t}, v{t}, v{t+1}",
            f"v_mov_b32 v{t+1}, v{t}", f"v_permlane16_swap_b32 v{t}, v{t+1}", f"v_max_f32 v{t}, v{t}, v{t+1}"]

def p_from_s(pb, j, nd):
    L = []
    for kt in range(2):
        s = S_(kt, j)
        L += [f"v_add_f32 v{s+r}, v{s+r}, v{nd}" for r in range(4)]
        L += [f"v_exp_f32 v{s+r}, v{s+r}" for r in range(4)]
        L += [f"v_cvt_pk_bf16_f32 v{P_(pb,j)+2*kt}, v{s}, v{s+1}", f"v_cvt_pk_bf16_f32 v{P_(pb,j)+2*kt+1}, v{s+2}, v{s+3}"]
    return L

def softmax_first(j, masked):
    L = []
    if masked:
        for kt in range(2):
            c, m = mask_ops(kt, j)
            L += c + m
    t = vT + 2*(j & 1)
    L += rowmax(j, t)
    L += [f"v_max_f32 v{t}, s{sBIG}, v{t}", f"v_add_f32 v{t}, s{sBIAS}, v{t}"]
    L += [f"v_sub_f32 v{M_(j)+r}, 0, v{t}" for r in range(4)]
    L += p_from_s(0, j, M_(j))
    return L

def slow_path(P, name, ret, pb):
    P(f"{name}:")
    P.lgkm, P.vm = [], []
    P("s_nop 7")
    for j in range(4):
        t = vT
        put(P, rowmax(j, t))
        P(f"v_add_f32 v{t}, s{sBIAS}, v{t}\nv_max_f32 v{t}, 0, v{t}\nv_sub_f32 v{t}, 0, v{t}\nv_exp_f32 v{t+1}, v{t}")
        for r in range(4): P(f"v_add_f32 v{M_(j)+r}, v{M_(j)+r}, v{t}")
        for r in range(4): P(f"v_mul_f32 v{L_(j)+r}, v{L_(j)+r}, v{t+1}")
        for dt in range(8):
            for r in range(4): P(f"v_mul_f32 v{O_(dt,j)+r}, v{O_(dt,j)+r}, v{t+1}")
        put(P, p_from_s(pb, j, t))
    P(f"s_nop 1\ns_branch {ret}")

class Att:
    def __init__(self, P, st):
        self.P, self.st = P, st
        self.slow = []
        self.n = 0

    def end_iter(self, vm=16):
        self.st()
        self.P(f"s_waitcnt vmcnt({vm}) lgkmcnt(0)\ns_barrier")
        self.st()

    def iteration(self, qb, etype, masked=False, czero=False, pre=None, tail=None):
        P = self.P
        pb_new = 0 if etype else 1
        off = 0 if etype else 32768
        mf = qk_list(qb, False) + pv_list(1 - pb_new, czero)
        fill = {}
        for k, x in enumerate(rd_v(off)): fill.setdefault(k, []).append(x)
        if pre: fill.setdefault(0, []).extend(pre)
        U = softmax_units(pb_new, masked)
        D = dma_stage(etype)
        Kr = rd_k(off)
        extra = {}
        dpos = [9, 10, 14, 18, 22, 25, 26, 27, 31, 36, 41, 44]
        for it, s in zip(D, dpos): extra.setdefault(s, []).append(it)
        for k, x in enumerate(Kr): extra.setdefault(33 + 3*k + (k >= 3), []).append(x)
        free = [s for s in range(8, 67) if s not in extra]
        for s, its in extra.items():
            for it in its: fill.setdefault(s, []).append(it)
        nU = len(U)
        for n, (tau, ins) in enumerate(U):
            s = free[n * len(free) // nU]
            s = max(s, 4*tau + 7)
            fill.setdefault(s, []).extend(ins)
        self.n += 1
        lab = f"A{self.n}"
        chk = [f"v_and_b32 v{vOR}, s{sMASK}, v{vOR}", f"v_cmp_ne_u32 vcc, 0, v{vOR}"]
        fill.setdefault(66, []).extend(chk)
        if not etype:
            fill.setdefault(67, []).append(f"v_xor_b32 v{vRD}, 0x10000, v{vRD}")
        if tail: fill.setdefault(67, []).extend(tail)
        for k, m in enumerate(mf):
            P(m)
            for f in fill.get(k, []): put(P, f)
        P(f"s_cbranch_vccnz {lab}_slow" if not OPT["force_slow"] else f"s_branch {lab}_slow")
        P(f"{lab}_ret:")
        self.slow.append((f"{lab}_slow", f"{lab}_ret", pb_new))
        self.end_iter()

    def ml_write(self, which):
        src = M_ if which == 0 else L_
        return [f"ds_write_b32 v{vML}, v{src(j)} offset:{(which*4 + j)*256}" for j in range(4)]

    def final(self, first_b):
        P = self.P
        pv = pv_list(1, False)
        ones = [m for k, m in enumerate(pv) if k % 9 == 0]
        pv = ones + [m for k, m in enumerate(pv) if k % 9]
        fill = {}
        save = [f"v_mov_b32 v{vU+j}, v{M_(j)}" for j in range(4)]
        if first_b:
            mf = qk_list(1, True) + pv
            for k, x in enumerate(rd_v(0)): fill.setdefault(k, []).append(x)
            fill.setdefault(0, []).extend(save + self.ml_write(0))
            fill.setdefault(1, []).append([f"s_mov_b32 s{S_K+2}, s{sNB}", f"s_mov_b32 s{S_V+2}, s{sNB}"])
            fill.setdefault(2, []).append([f"s_cmp_eq_u32 s{sI}, 0", f"s_cselect_b32 s{sT}, 64, 0x1000", f"v_subrev_u32 v{vZ}, s{sT}, v{vZ}"])
            spread(fill, dma_stage(True), 8, 40)
            spread(fill, rd_k(0), 33, 56)
            for j in range(4):
                spread(fill, softmax_first(j, True), 12 + 14*j, 12 + 14*j + 13)
            fill.setdefault(46, []).extend(self.ml_write(1))
            fill.setdefault(67, []).append([f"s_sub_u32 s{sT}, s{sT}, 64", f"v_add_u32 v{vZ}, s{sT}, v{vZ}"])
        else:
            mf = pv
            put(P, rd_v(0)); put(P, save); put(P, self.ml_write(0))
            fill.setdefault(14, []).extend(self.ml_write(1))
        for k, m in enumerate(mf):
            P(m)
            for f in fill.get(k, []): put(P, f)
        self.end_iter()

    def merge(self, qb, last):
        P = self.P
        a_sp, a_sl = vU + 12, vU + 13
        P(f"v_xor_b32 v{a_sp}, 0x2000, v{vML}")
        for k in range(8):
            P(f"ds_read_b32 v{vU+4+k}, v{a_sp} offset:{k*256}")
        P(f"v_and_b32 v{a_sl}, 0x103ff, v{vRD}")
        P(f"s_lshl_b32 s{sT}, s{sWAVE}, 13")
        P(f"v_add_u32 v{a_sl}, s{sT}, v{a_sl}")
        P(f"v_and_b32 v{a_sp}, 0x3ff, v{vRD}\ns_add_u32 s{sT}, s{sT}, {SPARE}\nv_add_u32 v{a_sp}, s{sT}, v{a_sp}")
        for dt in range(4, 6):
            for j in range(4):
                P(f"ds_write_b128 v{a_sl}, {vr(O_(dt, j))} offset:{((dt-4)*4 + j)*1024}")
        P("s_waitcnt lgkmcnt(8)")
        for dt in range(6, 8):
            for j in range(4):
                P(f"ds_write_b128 v{a_sp}, {vr(O_(dt, j))} offset:{((dt-6)*4 + j)*1024}")
        for j in range(4):
            mo, mp, lp = vU + j, vU + 4 + j, vU + 8 + j
            t = vT
            P(f"v_min_f32 v{t}, v{mo}, v{mp}")
            P(f"v_sub_f32 v{mo}, v{t}, v{mo}\nv_sub_f32 v{mp}, v{t}, v{mp}")
            P(f"v_exp_f32 v{mo}, v{mo}\nv_exp_f32 v{mp}, v{mp}")
            P(f"v_accvgpr_read_b32 v{t+1}, a{aG + qb*4 + j}")
            P(f"v_mul_f32 v{lp}, v{lp}, v{mp}\nv_fmac_f32 v{lp}, v{L_(j)}, v{mo}")
            P(f"v_rcp_f32 v{lp}, v{lp}")
            P(f"v_mul_f32 v{lp}, v{lp}, v{t+1}")
            P(f"v_mul_f32 v{mo}, v{mo}, v{lp}\nv_mul_f32 v{mp}, v{mp}, v{lp}")
        for dt in range(4):
            for j in range(4):
                for r in range(4): P(f"v_mul_f32 v{O_(dt,j)+r}, v{O_(dt,j)+r}, v{vU+j}")
        P("s_waitcnt lgkmcnt(0)\ns_barrier")
        P(f"v_xor_b32 v{a_sl}, 0x2000, v{a_sl}\nv_xor_b32 v{a_sp}, 0x2000, v{a_sp}")
        for dt in range(4, 6):
            for j in range(4):
                P(f"ds_read_b128 {vr(O_(dt, j))}, v{a_sl} offset:{((dt-4)*4 + j)*1024}")
        for dt in range(6, 8):
            for j in range(4):
                P(f"ds_read_b128 {vr(O_(dt, j))}, v{a_sp} offset:{((dt-6)*4 + j)*1024}")
        vst = vSTA if qb == 0 else vSTB
        for m in range(2):
            if m == 1 and not last:
                P("s_waitcnt lgkmcnt(0)\ns_barrier")
            for j in range(4):
                for dt in (2*m, 2*m + 1):
                    for r in range(4): P(f"v_fmac_f32 v{O_(dt,j)+r}, v{O_(dt+4,j)+r}, v{vU+4+j}")
                a, b = O_(2*m, j), O_(2*m + 1, j)
                P(f"v_cvt_pk_bf16_f32 v{a}, v{a}, v{a+1}\nv_cvt_pk_bf16_f32 v{a+1}, v{a+2}, v{a+3}")
                P(f"v_cvt_pk_bf16_f32 v{a+2}, v{b}, v{b+1}\nv_cvt_pk_bf16_f32 v{a+3}, v{b+2}, v{b+3}")
                if j == 0: P(f"s_mov_b32 s{sT}, {m*4096}")
                P(f"buffer_store_dwordx4 {vr(a)}, v{vst}, s[{S_W}:{S_W+3}], s{sT} offen offset:{j*1024}", "ST")

    def qblock_loop(self, qb):
        P = self.P
        tag = "AB"[qb]
        zadd = [f"v_add_u32 v{vZ}, 64, v{vZ}"]
        if qb == 1:
            P(f"s_cmp_eq_u32 s{sI}, 0\ns_cbranch_scc1 L_{tag}_om1")
        self.iteration(qb, False, czero=True, tail=[f"s_cmp_eq_u32 s{sCNT}, 0"])
        P(f"s_cbranch_scc1 L_{tag}_tail")
        P(f"L_{tag}_loop:")
        self.iteration(qb, True)
        self.iteration(qb, False, tail=[f"s_sub_u32 s{sCNT}, s{sCNT}, 1", f"s_cmp_lg_u32 s{sCNT}, 0"])
        P(f"s_cbranch_scc1 L_{tag}_loop")
        P(f"L_{tag}_tail:")
        self.iteration(qb, True, masked=True)
        self.iteration(qb, False, masked=True, pre=zadd)
        if qb == 1:
            P(f"s_branch L_{tag}_fin")
            P(f"L_{tag}_om1:")
            self.iteration(qb, False, masked=True, czero=True, pre=zadd)
            P(f"L_{tag}_fin:")


def gen_p2():
    P = Prog()
    st = Stamper(P, OPT["stamp"], aSTAMP, 31, sWAVE, S_W, s0=sST)
    P("s_cmp_ge_u32 s2, 256\ns_cbranch_scc1 P2_end")
    P("s_load_dwordx2 s[8:9], s[0:1], 0\ns_load_dwordx2 s[12:13], s[0:1], 16\ns_load_dwordx2 s[34:35], s[0:1], 104")
    P("v_lshrrev_b32 v27, 6, v0\nv_and_b32 v24, 63, v0")
    P(f"v_readfirstlane_b32 s{sWAVE}, v27")
    P("v_lshrrev_b32 v25, 3, v24\nv_lshrrev_b32 v26, 4, v24")
    P(f"s_and_b32 s3, s2, 7\ns_lshl_b32 s3, s3, 2\ns_bfe_u32 s4, s2, 0x20003\ns_add_u32 s{sHEAD}, s3, s4\ns_lshr_b32 s{sI}, s2, 5")
    P(f"s_lshr_b32 s{sRG}, s{sWAVE}, 1\ns_and_b32 s{sPAR}, s{sWAVE}, 1")
    P(f"s_lshl_b32 s{sMX}, s{sWAVE}, 13\ns_lshl_b32 s{sMY}, s{sWAVE}, 11")
    P(f"s_sub_u32 s3, 15, s{sI}\ns_cmp_ge_u32 s{sWAVE}, 2\ns_cselect_b32 s5, s{sI}, s3\ns_lshl_b32 s5, s5, 7\ns_lshl_b32 s6, s{sPAR}, 6\ns_add_u32 s5, s5, s6")
    x_voffs(P, vX, 1280, 5)
    P(f"s_lshl_b32 s5, s{sHEAD}, 8")
    y_voffs(P, vY, 8192, 5, sWAVE, sT, 2)
    srd(P, S_X, 8, 2048*640*2)
    srd(P, S_YA, 12, 640*4096*2); srd(P, S_YB, 12, 640*4096*2, add=128)
    accq = lambda i, t: ("v", 128 + (i*4 + t)*4)
    TQ = Tile("Q", 10, 2, S_X, S_YA, S_YB, vX, vY, vYRD, 1280, 8192, accq, sxo_init="0", syo_init="0", rot=False, smy=sMY)
    G = Gemm(P, [TQ], XB, YB, vXRD, sXO, sXO2, sYO, sMX, 0, 128, LA=OPT["LA"], xrot=2, stamp=None)
    st()
    G.prologue_dma()
    x_rdaddr(P, vXRD, XB, sWAVE, 5)
    y_rdaddr(P, vYRD, YB, sWAVE, 5, 2)
    srd(P, S_W, 34, WS_BYTES)
    P(f"s_lshl_b32 s5, s{sHEAD}, 19")
    for d, base in ((S_K, WS_K), (S_V, WS_V)):
        P(f"s_add_u32 s6, s5, {base}\ns_add_u32 s{d}, s34, s6\ns_addc_u32 s{d+1}, s35, 0\ns_mov_b32 s{d+2}, 0x80000\ns_mov_b32 s{d+3}, 0x20000")
    P(f"s_mov_b32 s{sC0}, {hex(f32bits(math.log2(math.e) / math.sqrt(128.0)))}")
    P(f"s_mov_b32 s{sMASK}, 0x40004000\ns_mov_b32 s{sBIAS}, {hex(f32bits(OPT['bias']))}\ns_mov_b32 s{sBIG}, {hex(f32bits(-1e30))}")
    P(f"s_sub_u32 s3, 16, s{sI}\ns_lshl_b32 s{sLIM}, s3, 15\ns_add_u32 s{sLIM1}, s{sLIM}, 16384")
    P(f"s_add_u32 s{sNB}, s{sI}, 1\ns_lshl_b32 s{sNB}, s{sNB}, 15")
    P(f"s_sub_u32 s{sCNT}, 14, s{sI}")
    P(f"s_mov_b32 s{sE}, 32768\ns_mov_b32 s{sO}, 49152")
    P(f"s_lshl_b32 s{sM}, s{sWAVE}, 12")
    P("v_lshlrev_b32 v27, 4, v24")
    P(f"v_add_u32 v{vDK}, s{sM}, v27")
    P(f"s_lshr_b32 s5, s{sWAVE}, 1\ns_xor_b32 s5, s5, s{sWAVE}\ns_lshl_b32 s5, s5, 12\nv_add_u32 v{vDV}, s5, v27")
    P(f"s_lshl_b32 s5, s{sPAR}, 13\nv_add_u32 v{vRD}, s5, v27")
    P(f"s_lshl_b32 s5, s{sRG}, 15\ns_lshl_b32 s6, s{sPAR}, 10\ns_add_u32 s5, s5, s6\ns_add_u32 s5, s5, {YB}\nv_add_u32 v{vQW}, s5, v27")
    P(f"s_lshl_b32 s5, s{sRG}, 14\ns_add_u32 s5, s5, {YB}\nv_add_u32 v{vQW+1}, s5, v27")
    P(f"s_lshl_b32 s6, s{sHEAD}, 2\ns_lshl_b32 s7, s{sPAR}, 1\ns_add_u32 s6, s6, s7")
    for v, q in ((vSTA, "s3"), (vSTB, f"s{sI}")):
        if v == vSTA: P(f"s_sub_u32 s3, 15, s{sI}")
        P(f"s_lshl_b32 s5, {q}, 1\ns_add_u32 s5, s5, s{sRG}\ns_mul_i32 s5, s5, {NKS}\ns_add_u32 s5, s5, s6\ns_lshl_b32 s5, s5, 12\ns_add_u32 s5, s5, {WS_A}")
        P(f"v_add_u32 v{v}, s5, v27")
    P("v_and_b32 v28, 15, v24\nv_lshlrev_b32 v29, 2, v28")
    for qb, q in ((0, "s3"), (1, f"s{sI}")):
        P(f"s_lshl_b32 s5, {q}, 9\ns_lshl_b32 s6, s{sRG}, 8\ns_add_u32 s5, s5, s6\ns_add_u32 s5, s5, {WS_G}")
        for j in range(4):
            P(f"buffer_load_dword a{aG + qb*4 + j}, v29, s[{S_W}:{S_W+3}], s5 offen offset:{j*64}", "TCH")
    P(f"s_xor_b32 s5, s{sWAVE}, 1\ns_lshl_b32 s5, s5, 13\ns_add_u32 s5, s5, {SPARE}\nv_lshlrev_b32 v27, 2, v24\nv_add_u32 v{vML}, s5, v27")
    P(f"v_lshlrev_b32 v27, 2, v26\nv_sub_u32 v27, v27, v28")
    P(f"s_lshl_b32 s5, s{sPAR}, 5\ns_lshl_b32 s6, s{sRG}, 6\ns_sub_u32 s5, s5, s6\ns_add_u32 s5, s5, 4\nv_add_u32 v{vZ}, s5, v27")
    P("v_mov_b32 v27, 0x3f803f80")
    for r in range(4): P(f"v_accvgpr_write_b32 a{aONE+r}, v27")

    def stage_init(slot, kpos, vpos, tag):
        L = []
        for part, (v, s, pos) in enumerate(((vDK, S_K, kpos), (vDV if vpos is not None else vDK, S_V if vpos is not None else S_K, vpos if vpos is not None else kpos + 1))):
            d = [(x[0], tag) for x in dma4(v, s, sT)]
            L += [[f"s_add_u32 m0, s{sM}, {slot*32768 + part*16384}", f"s_mov_b32 s{sT}, {pos*16384}", d[0]], d[1], d[2], d[3]]
        return L
    G.plan(after_bar=lambda p: stage_init(0, 0, None, "SM1") if p == 7 else (stage_init(1, 2, 0, "KV") if p == 8 else None))
    def q_epi(i):
        L = []
        for sub in range(2):
            a, b = accq(i, 2*sub)[1], accq(i, 2*sub + 1)[1]
            L += [f"v_mul_f32 v{a+r}, s{sC0}, v{a+r}" for r in range(8)]
            L += [f"v_cvt_pk_bf16_f32 v{a}, v{a}, v{a+1}", f"v_cvt_pk_bf16_f32 v{a+1}, v{a+2}, v{a+3}",
                  f"v_cvt_pk_bf16_f32 v{a+2}, v{b}, v{b+1}", f"v_cvt_pk_bf16_f32 v{a+3}, v{b+2}, v{b+3}"]
            L.append(f"ds_write_b128 v{vQW}, {vr(a)} offset:{i*4096 + sub*2048}")
        return L
    for i in range(7):
        G.add(q_epi(i), G.slot(9, i+1, 1), G.slot(9, i+1, 7))
    G.emit()
    put(P, q_epi(7))
    st()
    P.wait(["SM1"], lgkm0=True); P("s_barrier")
    st()
    A = Att(P, st)
    qrd = lambda qb: [f"ds_read_b128 {vr(Q_(qb, j, ks), 4, 'a')}, v{vQW+1} offset:{qb*32768 + (j*4 + ks)*1024}" for j in range(4) for ks in range(4)]
    qa, k0 = qrd(0), rd_k(0)
    put(P, k0[:4]); put(P, qa[:4]); put(P, k0[4:]); put(P, qa[4:])
    put(P, stage_init(2, 3, 1, "KV"))
    P(f"v_mov_b32 v{vT+7}, 0xff800000")
    P(f"s_xor_b32 s{sM}, s{sM}, 0x10000")
    fill = {}
    spread(fill, qrd(1), 0, 20)
    mf = qk_list(0, True)
    for k, m in enumerate(mf):
        P(m)
        for f in fill.get(k, []): put(P, f)
    P("s_waitcnt lgkmcnt(0)\ns_barrier")
    put(P, rd_k(16384))
    put(P, dma_stage(True))
    for j in range(4): put(P, softmax_first(j, False))
    A.end_iter()
    A.qblock_loop(0)
    A.final(True)
    A.merge(0, False)
    P(f"s_sub_u32 s{sCNT}, s{sI}, 1")
    A.qblock_loop(1)
    A.final(False)
    A.merge(1, True)
    st(); P("s_waitcnt vmcnt(0)"); st.out()
    P("P2_end:")
    P("s_endpgm")
    for s in A.slow: slow_path(P, *s)
    return P
```

```python
from asmlib import *
from gemm import put
from p1 import f32bits, srd, Stamper, WS_W, WS_A, WS_G, WS_BYTES, NKS

OPT = dict(stamp=False, depth=8, rot=True)
LDS = 61440
S_A, S_Wf, S_W, S_O = 36, 40, 44, 48
sWAVE, sRB, sCB, sR, sKS, sAO, sWO, sWO2, sR7, sR8, sHB, sCBase = 60, 61, 62, 63, 64, 65, 66, 67, 68, 69, 70, 71
vA, vW, vG, vOUT = 4, 8, 12, 9
def acc(mt, rt): return 16 + (mt*4 + rt)*4
def ring(slot):
    if slot < 4: return ("v", 96 + slot*36)
    return ("a", (slot - 4)*36)

def gen_p3():
    P = Prog()
    D = OPT["depth"]
    st = Stamper(P, OPT["stamp"], 240, 3, sWAVE, S_W)
    P("s_cmp_ge_u32 s2, 256\ns_cbranch_scc1 P3_end")
    P("s_load_dwordx2 s[30:31], s[0:1], 88\ns_load_dwordx2 s[34:35], s[0:1], 104")
    P("v_lshrrev_b32 v1, 6, v0\nv_and_b32 v0, 63, v0")
    P(f"v_readfirstlane_b32 s{sWAVE}, v1")
    P("v_lshlrev_b32 v1, 4, v0")
    P(f"s_bfe_u32 s3, s2, 0x20001\ns_lshl_b32 s3, s3, 3\ns_lshr_b32 s4, s2, 5\ns_add_u32 s{sRB}, s3, s4")
    P(f"s_and_b32 s3, s2, 1\ns_lshl_b32 s3, s3, 2\ns_bfe_u32 s5, s2, 0x20003\ns_add_u32 s{sCB}, s3, s5")
    if OPT["rot"]:
        P(f"s_lshl_b32 s5, s5, 1\ns_add_u32 s{sR8}, s5, s4\ns_and_b32 s{sR8}, s{sR8}, 7\ns_cmp_eq_u32 s{sR8}, 7\ns_cselect_b32 s{sR7}, 0, s{sR8}")
    else:
        P(f"s_mov_b32 s{sR8}, 0\ns_mov_b32 s{sR7}, 0")
    P(f"s_mul_i32 s5, s{sRB}, {NKS*4096}")
    for rt in range(4):
        P(f"s_xor_b32 s6, s{sWAVE}, {rt}\ns_lshl_b32 s6, s6, 10\ns_add_u32 s6, s6, s5\nv_add_u32 v{vA+rt}, s6, v1")
    P(f"s_mul_i32 s5, s{sCB}, 5120\nv_add_u32 v{vW}, s5, v1")
    P(f"s_mul_i32 s{sHB}, s{sWAVE}, 14\ns_add_u32 s{sHB}, s{sHB}, 128\ns_lshl_b32 s{sCBase}, s{sWAVE}, 5")
    for d, base, n in ((S_A, WS_A, 32*NKS*4096), (S_Wf, WS_W, NKS*40960)):
        P(f"s_add_u32 s{d}, s34, {base}\ns_addc_u32 s{d+1}, s35, 0\ns_mov_b32 s{d+2}, {n}\ns_mov_b32 s{d+3}, 0x20000")
    st()
    steps = [("h", n // 7, 7) for n in range(14)] + [("c", n // 8, 8) for n in range(32)]
    def loads(n):
        kind, win, W = steps[n]
        sr = sR7 if kind == "h" else sR8
        ty, b = ring(n % D)
        L = [[f"s_add_u32 s{sKS}, s{sHB if kind == 'h' else sCBase}, s{sr}", f"s_add_u32 s{sKS}, s{sKS}, {win*W}",
              f"s_lshl_b32 s{sAO}, s{sKS}, 12", f"s_mul_i32 s{sWO}, s{sKS}, 40960", f"s_add_u32 s{sWO2}, s{sWO}, 4096",
              f"s_add_u32 s{sr}, s{sr}, 1", f"s_cmp_eq_u32 s{sr}, {W}", f"s_cselect_b32 s{sr}, 0, s{sr}"]]
        for rt in range(4):
            L.append(f"buffer_load_dwordx4 {vr(b + rt*4, 4, ty)}, v{vA+rt}, s[{S_A}:{S_A+3}], s{sAO} offen")
        for mt in range(5):
            L.append(f"buffer_load_dwordx4 {vr(b + 16 + mt*4, 4, ty)}, v{vW}, s[{S_Wf}:{S_Wf+3}], s{sWO2 if mt == 4 else sWO} offen offset:{(mt & 3)*1024}")
        return L
    srd(P, S_W, 34, WS_BYTES)
    P(f"v_and_b32 v2, 15, v0\nv_lshlrev_b32 v3, 2, v2")
    for rt in range(4):
        P(f"s_xor_b32 s6, s{sWAVE}, {rt}\ns_lshl_b32 s6, s6, 6\ns_lshl_b32 s5, s{sRB}, 8\ns_add_u32 s6, s6, s5\ns_add_u32 s6, s6, {WS_G}")
        P(f"buffer_load_dword v{vG+rt}, v3, s[{S_W}:{S_W+3}], s6 offen")
    for n in range(D - 2): put(P, loads(n))
    srd(P, S_O, 30, 2048*640*2)
    P(f"s_lshl_b32 s5, s{sRB}, 6\ns_lshl_b32 s6, s{sWAVE}, 4\ns_add_u32 s5, s5, s6\nv_add_u32 v2, s5, v2\nv_mul_u32_u24 v2, 1280, v2")
    P(f"v_lshrrev_b32 v3, 4, v0\nv_lshlrev_b32 v3, 3, v3\nv_add_u32 v2, v2, v3\ns_mul_i32 s5, s{sCB}, 160\nv_add_u32 v{vOUT}, s5, v2")
    for rt in range(4): P(f"v_sub_f32 v{vG+rt}, 1.0, v{vG+rt}")
    N = len(steps)
    for n in range(0, N, 2):
        mf = []
        for mt in range(5):
            for rt in range(4):
                for s in range(2):
                    ty, b = ring((n + s) % D)
                    c = "0" if (n == 0 and s == 0) else vr(acc(mt, rt))
                    mf.append(f"v_mfma_f32_16x16x32_bf16 {vr(acc(mt, rt))}, {vr(b + 16 + mt*4, 4, ty)}, {vr(b + rt*4, 4, ty)}, {c}")
        fill = {}
        Ld = []
        for q in (n + D - 2, n + D - 1):
            if q < N: Ld += loads(q)
        spread(fill, Ld, 0, 39)
        for k, m in enumerate(mf):
            P(m)
            for f in fill.get(k, []): put(P, f)
        if n + 2 == 14:
            for mt in range(5):
                for rt in range(4):
                    for r in range(4): P(f"v_mul_f32 v{acc(mt, rt)+r}, v{acc(mt, rt)+r}, v{vG+rt}")
        if n % 8 == 6: st()
    for rt in range(1, 4):
        P(f"s_xor_b32 s6, s{sWAVE}, {rt}\ns_mul_i32 s6, s6, 15360\ns_add_u32 s6, s6, {(rt-1)*5120}\nv_add_u32 v{vA+rt}, s6, v1")
        for mt in range(5):
            P(f"ds_write_b128 v{vA+rt}, {vr(acc(mt, rt))} offset:{mt*1024}")
    P(f"s_mul_i32 s6, s{sWAVE}, 15360\nv_add_u32 v{vA}, s6, v1")
    P("s_waitcnt lgkmcnt(0)\ns_barrier")
    for mt in range(5):
        for k in range(3):
            P(f"ds_read_b128 {vr(acc(mt, k+1))}, v{vA} offset:{k*5120 + mt*1024}")
    for mt in range(5):
        a = acc(mt, 0)
        for r in range(4):
            P(f"v_add_f32 v{a+r}, v{a+r}, v{acc(mt,1)+r}\nv_add_f32 v{acc(mt,2)+r}, v{acc(mt,2)+r}, v{acc(mt,3)+r}")
        for r in range(4):
            P(f"v_add_f32 v{a+r}, v{a+r}, v{acc(mt,2)+r}")
        P(f"v_cvt_pk_bf16_f32 v{a}, v{a}, v{a+1}\nv_cvt_pk_bf16_f32 v{a+1}, v{a+2}, v{a+3}")
        P(f"buffer_store_dwordx2 {vr(a, 2)}, v{vOUT}, s[{S_O}:{S_O+3}], 0 offen offset:{mt*32}")
    st(); P("s_waitcnt vmcnt(0)"); st.out()
    P("P3_end:")
    P("s_endpgm")
    return P
```

```python
import sys, importlib
from asmlib import *

HEADER = open("gated_mix__compressed_kv_cla__swiglu_ffn__prompt.s.ref").read().split("; Override launch")[0]

import re
MACROS = {}
def compress(t):
    m = re.match(r"v_mfma_f32_16x16x32_bf16 ([va])\[(\d+):\d+\], ([va])\[(\d+):\d+\], ([va])\[(\d+):\d+\], (0|([va])\[(\d+):\d+\])$", t)
    if m:
        dt, d, at, a, bt, b, c, ct, cr = m.groups()
        kind = "z" if c == "0" else ("s" if (ct == dt and cr == d) else "c")
        name = f"m{dt}{at}{bt}{kind}"
        if name not in MACROS:
            cs = {"z": "0", "s": f"{dt}[\\d:\\d+3]", "c": f"{dt}[\\c:\\c+3]"}[kind]
            MACROS[name] = f".macro {name} d, a, b, c=0\n v_mfma_f32_16x16x32_bf16 {dt}[\\d:\\d+3], {at}[\\a:\\a+3], {bt}[\\b:\\b+3], {cs}\n.endm\n"
        return f"{name} {d},{a},{b}" + (f",{cr}" if kind == "c" else "")
    m = re.match(r"ds_read_b64_tr_b16 ([va])\[(\d+):\d+\], v(\d+) offset:(\d+)$", t)
    if m:
        name = "rt" + m.group(1)
        MACROS.setdefault(name, f".macro {name} d, a, o\n ds_read_b64_tr_b16 {m.group(1)}[\\d:\\d+1], v\\a offset:\\o\n.endm\n")
        return f"{name} {m.group(2)},{m.group(3)},{m.group(4)}"
    m = re.match(r"ds_read_b128 ([va])\[(\d+):\d+\], v(\d+) offset:(\d+)$", t)
    if m:
        name = "rq" + m.group(1)
        MACROS.setdefault(name, f".macro {name} d, a, o\n ds_read_b128 {m.group(1)}[\\d:\\d+3], v\\a offset:\\o\n.endm\n")
        return f"{name} {m.group(2)},{m.group(3)},{m.group(4)}"
    return t

def kernel_text(name, P, vgpr=512, accum=256, sgpr=102):
    ins, nn = fix_hazards(P.ins)
    bad = check_branches(ins)
    for b in bad: print("BRANCH HAZARD", name, b, file=sys.stderr)
    print(f"{name}: {len(ins)} instrs, {nn} nops inserted", file=sys.stderr)
    body = "\n".join(compress(i.text) for i in ins)
    t = f".globl {name}\n.p2align 8\n.type {name},@function\n{name}:\n{body}\n"
    d = (f".p2align 6\n.amdhsa_kernel {name}\n  .amdhsa_next_free_vgpr {vgpr}\n  .amdhsa_next_free_sgpr {sgpr}\n"
         f"  .amdhsa_accum_offset {accum}\n  .amdhsa_group_segment_fixed_size 0\n  .amdhsa_kernarg_size 112\n"
         "  .amdhsa_user_sgpr_count 2\n  .amdhsa_user_sgpr_kernarg_segment_ptr 1\n  .amdhsa_system_sgpr_workgroup_id_x 1\n.end_amdhsa_kernel\n")
    return t, d

def build_file(kernels, path):
    out = HEADER
    for (n, P, g, b, l) in kernels:
        out += f"; @launch kernel={n} grid=({g},1,1) block=({b},1,1) lds={l}\n"
    out += '.amdgcn_target "amdgcn-amd-amdhsa--gfx950"\n.text\n'
    ds = ""; ts = ""
    for (n, P, g, b, l) in kernels:
        t, d = kernel_text(n, P)
        ts += t; ds += d
    out += "".join(MACROS.values()) + ts
    out += '.section .rodata,"a"\n' + ds
    open(path, "w").write(out)
    print(path, len(out), "bytes", file=sys.stderr)

if __name__ == "__main__":
    import p1, p2, p3
    which = sys.argv[2] if len(sys.argv) > 2 else "123"
    for a in sys.argv[3:]:
        k, v = a.split("="); m, k = k.split(".")
        {"p1": p1, "p2": p2, "p3": p3}[m].OPT[k] = eval(v)
    ks = []
    if "1" in which: ks.append(("p1_kernel", p1.gen_p1(), 256, 256, 163840))
    if "2" in which: ks.append(("p2_kernel", p2.gen_p2(), 256, 256, 163840))
    if "3" in which: ks.append(("p3_kernel", p3.gen_p3(), 256, 256, p3.LDS))
    build_file(ks, sys.argv[1])
```
